```python
import torch

def _softmax(x, axis=-1):
    return torch.softmax(x, dim=axis)
def _gelu(x):
    return torch.nn.functional.gelu(x, approximate="tanh")
def _silu(x):
    return torch.nn.functional.silu(x)
def _sigmoid(x):
    return torch.sigmoid(x)
def _layernorm(x, axis=-1, eps=1e-5):
    m = x.mean(dim=axis, keepdim=True)
    v = x.var(dim=axis, keepdim=True, unbiased=False)
    return (x - m) / torch.sqrt(v + eps)
def _scatter_add(tgt, idx, src, axis=0):
    return tgt.clone().index_add_(axis, idx, src)
def _segment_sum(src, seg, n):
    out = torch.zeros((n,) + src.shape[1:], dtype=src.dtype)
    return out.index_add_(0, seg, src)
def _pad(x, pw):
    flat = tuple(v for pair in reversed(pw) for v in pair)
    return torch.nn.functional.pad(x, flat)

kernel_name = 'standalone__hybrid_graph_tf_nagphormer__graph'

def setup_inputs():

    _w = (lambda a: (lambda t: t.to(torch.bfloat16) if t.is_floating_point() else t)(torch.as_tensor(a)))
    N, deg, D = 12500, 32, 128
    E = N * deg
    src = (lambda lo, hi, *s: torch.randint(lo, hi, s))(0, N, E).to(torch.int64)
    dst = (lambda lo, hi, *s: torch.randint(lo, hi, s))(0, N, E).to(torch.int64)
    deg_cnt = torch.bincount(dst, minlength=N).to(float) + 1.0
    sc = 1.0 / D ** 0.5
    return {
        "x": _w((lambda *s: torch.randn(*s, dtype=torch.bfloat16) * 0.1)(N, D)),
        "src": _w(src),
        "dst": _w(dst),
        "deg_inv_sqrt": _w(1.0 / (lambda _x: torch.sqrt(torch.as_tensor(_x)))(deg_cnt)),
        "wq": _w((lambda *s: torch.randn(*s, dtype=torch.bfloat16) * 1.6)(D, D) * sc),
        "wk": _w((lambda *s: torch.randn(*s, dtype=torch.bfloat16) * 1.6)(D, D) * sc),
        "wv": _w((lambda *s: torch.randn(*s, dtype=torch.bfloat16) * 0.1)(D, D) * sc),
        "wo": _w((lambda *s: torch.randn(*s, dtype=torch.bfloat16) * 0.1)(D, D) * sc),
        "w_r": _w((lambda *s: torch.randn(*s, dtype=torch.bfloat16) * 0.1)(D)),
    }

def reference(x, src, dst, deg_inv_sqrt, wq, wk, wv, wo, w_r):
    N, D = x.shape[0], x.shape[1]
    K = 7
    h = x
    toks = [x]
    for _ in range(K):
        msg = h[src] * deg_inv_sqrt[src, None] * deg_inv_sqrt[dst, None]
        h = _segment_sum(msg, dst, N)
        toks.append(h)
    tok = torch.stack(toks, axis=1)
    t = _layernorm(tok, axis=-1)
    q   = torch.einsum('nkd,de->nke', t, wq)
    key = torch.einsum('nkd,de->nke', t, wk)
    v   = torch.einsum('nkd,de->nke', t, wv)
    scale = 1.0 / (D ** 0.5)
    attn = _softmax(torch.einsum('nkd,nld->nkl', q, key) * scale, axis=-1)
    o = torch.einsum('nkl,nld->nkd', attn, v)
    o = tok + torch.einsum('nkd,de->nke', o, wo)
    r = _layernorm(o, axis=-1)
    alpha = _softmax(torch.einsum('nkd,d->nk', r, w_r), axis=-1)
    return torch.einsum('nk,nkd->nd', alpha, o)
```

```python
import re

TRANS = ("v_exp_f32","v_log_f32","v_rcp_f32","v_rsq_f32","v_sqrt_f32","v_sin_f32","v_cos_f32","v_rcp_iflag_f32")
DPPMOD = ("quad_perm","row_shl","row_shr","row_ror","wave_shl","wave_shr","wave_rol","wave_ror","row_mirror","row_half_mirror","row_bcast","row_newbcast")

def regs_of(tok):
    t = tok.strip()
    t = re.sub(r"^-", "", t)
    m = re.match(r"^(abs|neg|sext)\((.*)\)$", t)
    if m: t = m.group(2)
    t = t.strip("|")
    if t == "vcc": return {("s",106),("s",107)}
    if t == "vcc_lo": return {("s",106)}
    if t == "vcc_hi": return {("s",107)}
    if t == "exec": return {("s",126),("s",127)}
    if t == "exec_lo": return {("s",126)}
    if t == "exec_hi": return {("s",127)}
    if t == "m0": return {("s",124)}
    m = re.match(r"^([vsa])(\d+)$", t)
    if m: return {(m.group(1), int(m.group(2)))}
    m = re.match(r"^([vsa])\[(\d+):(\d+)\]$", t)
    if m: return {(m.group(1), i) for i in range(int(m.group(2)), int(m.group(3))+1)}
    return set()

EXEC = {("s",126),("s",127)}
VCC = {("s",106),("s",107)}
M0 = {("s",124)}

class Ins:
    __slots__=("text","op","ops","mods","cls","dst","src","label","target","passes","srcC","srcAB","dpp","sdata","ws","isbranch","uncond","lds_dma","opselw","lanesel")
    def __init__(self, text):
        self.text=text; self.label=None; self.target=None; self.isbranch=False; self.uncond=False
        self.dst=set(); self.src=set(); self.passes=0; self.srcC=set(); self.srcAB=set(); self.dpp=False
        self.sdata=set(); self.ws=1; self.lds_dma=False; self.opselw=False; self.lanesel=set()
        t=text.split(";")[0].strip()
        if t.endswith(":"):
            self.label=t[:-1]; self.cls="label"; self.op=""; self.ws=0; return
        if t=="" or t.startswith("."):
            self.cls="none"; self.op=""; self.ws=0; return
        parts=t.split(None,1); op=parts[0]; self.op=op
        rest=parts[1] if len(parts)>1 else ""
        ops=[o.strip() for o in rest.split(",")] if rest else []
        j=[]; depth=0; cur=""
        for ch in rest:
            if ch=="[": depth+=1
            if ch=="]": depth-=1
            if ch=="," and depth==0: j.append(cur.strip()); cur=""
            else: cur+=ch
        if cur.strip(): j.append(cur.strip())
        mods=""
        if j:
            last=j[-1].split(None,1)
            j[-1]=last[0]
            if len(last)>1: mods=last[1]
        self.ops=j; self.mods=mods
        R=[regs_of(o) for o in j]
        base=re.sub(r"_(e32|e64|dpp|sdwa)$","",op)
        if op.startswith("v_mfma") or op.startswith("v_smfmac"):
            self.cls="mfma"; self.dst=R[0]; self.srcAB=R[1]|R[2]; self.srcC=R[3]; self.src=self.srcAB|self.srcC
            if "4x4x4" in op: self.passes=2
            elif "16x16x32" in op or "16x16x16" in op: self.passes=4
            elif "32x32x16" in op or "32x32x8" in op: self.passes=8
            else: raise Exception("unknown mfma "+op)
        elif op.startswith("v_"):
            self.cls="valu"
            self.dpp = any(m in mods for m in DPPMOD)
            if base.startswith("v_cmpx"):
                self.dst=R[0]|EXEC; self.src=set().union(*R[1:])
            elif base in ("v_swap_b32","v_permlane32_swap_b32","v_permlane16_swap_b32"):
                self.dst=R[0]|R[1]; self.src=R[0]|R[1]
            elif base in ("v_add_co_u32","v_sub_co_u32","v_subrev_co_u32","v_addc_co_u32","v_subb_co_u32","v_subbrev_co_u32","v_mad_u64_u32","v_mad_i64_i32","v_div_scale_f32"):
                self.dst=R[0]|R[1]; self.src=set().union(*R[2:])
            elif base=="v_nop":
                pass
            else:
                self.dst=R[0]; self.src=set().union(*R[1:]) if len(R)>1 else set()
                if base in ("v_fmac_f32","v_dot2c_f32_bf16","v_fmac_f16","v_pk_fmac_f16","v_writelane_b32","v_dot2c_f32_f16") or self.dpp or "dst_unused:UNUSED_PRESERVE" in mods:
                    self.src|=R[0]
                if base in ("v_readlane_b32","v_writelane_b32"): self.lanesel=R[2]
                if base=="v_div_fmas_f32": self.src|=VCC
            if ("dst_sel:" in mods and "dst_sel:DWORD" not in mods): self.opselw=True
            if "op_sel:" in mods and not base.startswith("v_pk_"): self.opselw=True
        elif op.startswith("ds_"):
            self.cls="ds"
            isret = ("_rtn" in op) or op.startswith("ds_read") or op.startswith("ds_bpermute") or op.startswith("ds_permute") or op.startswith("ds_swizzle")
            if isret: self.dst=R[0]; self.src=set().union(*R[1:])
            else: self.src=set().union(*R)
        elif op.startswith("buffer_") or op.startswith("global_") or op.startswith("flat_"):
            self.cls="vmem"
            ml=mods.split()
            if op.startswith("global_load_lds") or (op.startswith("buffer_load") and "lds" in ml):
                self.lds_dma=True; self.src=set().union(*R)|M0
            elif "_load" in op:
                self.dst=R[0]; self.src=set().union(*R[1:])
                if "d16" in op: self.src|=R[0]
            elif "_store" in op:
                self.src=set().union(*R)
                if "x3" in op or "x4" in op:
                    self.sdata = R[0] if op.startswith("buffer_") else R[1]
            elif "_atomic" in op:
                if "sc0" in ml:
                    if op.startswith("buffer_"): self.dst=R[0]; self.src=set().union(*R)
                    else: self.dst=R[0]; self.src=set().union(*R[1:])
                else: self.src=set().union(*R)
            else:
                self.src=set().union(*R) if R else set()
        elif op.startswith("s_"):
            if op=="s_nop":
                self.cls="nop"; self.ws=int(j[0],0)+1
            elif op.startswith("s_cbranch") or op=="s_branch":
                self.cls="branch"; self.isbranch=True; self.target=j[0]; self.uncond=(op=="s_branch")
            elif op=="s_endpgm":
                self.cls="end"; self.uncond=True
            elif op.startswith("s_load") or op.startswith("s_buffer_load") or op.startswith("s_memtime") or op.startswith("s_memrealtime"):
                self.cls="smem"; self.dst=R[0]; self.src=set().union(*R[1:]) if len(R)>1 else set()
            elif op in ("s_waitcnt","s_barrier","s_setprio","s_sleep","s_sethalt"):
                self.cls="misc"
            elif op.startswith("s_cmp") or op.startswith("s_bitcmp"):
                self.cls="salu"; self.src=set().union(*R)
            else:
                self.cls="salu"; self.dst=R[0] if R else set(); self.src=set().union(*R[1:]) if len(R)>1 else set()
                if "saveexec" in op: self.dst|=EXEC; self.src|=EXEC
        else:
            raise Exception("unknown instr: "+text)

def isS(rs): return {r for r in rs if r[0]=="s"}
def isV(rs): return {r for r in rs if r[0] in "va"}

def need(p, c):
    n=0
    pv = p.cls=="valu"
    cbase=re.sub(r"_(e32|e64|dpp|sdwa)$","",c.op)
    pbase=re.sub(r"_(e32|e64|dpp|sdwa)$","",p.op)
    if pv:
        sd=isS(p.dst); vd=isV(p.dst)
        if c.cls=="valu":
            if sd & c.lanesel: n=max(n,4)
            if (sd-EXEC) & isS(c.src): n=max(n,2)
            if (sd&EXEC):
                if EXEC & c.src: n=max(n,2)
                if cbase in ("v_readlane_b32","v_readfirstlane_b32","v_writelane_b32"): n=max(n,4)
                if c.dpp: n=max(n,5)
                if cbase.startswith("v_permlane"): n=max(n,4)
            if cbase=="v_div_fmas_f32" and (sd&VCC): n=max(n,4)
            if c.dpp and (vd & c.src): n=max(n,2)
            if cbase in ("v_readlane_b32","v_readfirstlane_b32") and (vd & c.src): n=max(n,1)
            if cbase.startswith("v_permlane") and (vd & c.src): n=max(n,2)
            if p.opselw and (vd & (c.src|c.dst)): n=max(n,1)
            if pbase in TRANS and (vd & c.src): n=max(n,1)
            if pbase.startswith("v_dot"):
                if vd & (c.src|c.dst):
                    if pbase==cbase and not (vd & (regs_of(c.ops[1])|regs_of(c.ops[2]))): pass
                    else: n=max(n,3)
        if c.cls=="vmem" and (sd & isS(c.src)): n=max(n,5)
        if c.cls in ("vmem","ds") and pbase.startswith("v_dot") and (vd & c.src): n=max(n,3)
        if c.cls in ("vmem","ds") and pbase in TRANS and (vd & c.src): n=max(n,1)
        if c.cls=="mfma":
            if vd & c.src: n=max(n,3 if pbase.startswith("v_dot") else 2)
            if sd & EXEC: n=max(n,4)
    if p.cls=="vmem" and p.sdata:
        if p.sdata & c.dst: n=max(n, 2 if c.cls in("valu","mfma") else 1)
    if p.cls=="salu" and (p.dst & M0) and c.lds_dma: n=max(n,1)
    if p.cls=="mfma":
        i={2:0,4:1,8:2,16:3}[p.passes]
        if c.cls=="mfma":
            if p.dst & c.srcC:
                if p.dst==c.srcC and p.passes==c.passes: n=max(n,[2,0,0,0][i])
                else: n=max(n,[4,6,10,18][i])
            if p.dst & c.srcAB: n=max(n,[5,8,12,20][i])
            if (p.dst & c.dst) and not (p.dst & c.srcC): n=max(n,[4,6,10,18][i])
        elif c.cls in ("valu",):
            if p.dst & (c.src|c.dst): n=max(n,[5,8,12,20][i])
            if p.srcC & c.dst: n=max(n,[1,3,7,15][i])
        elif c.cls in ("vmem","ds"):
            if p.dst & (c.src|c.dst): n=max(n,[5,8,12,20][i])
            if p.srcC & c.dst: n=max(n,[1,3,7,15][i])
    return n

MAXWS=20
def pad_hazards(lines):
    ins=[Ins(l) for l in lines]
    changed=True; total=0
    while changed:
        changed=False
        labels={x.label:i for i,x in enumerate(ins) if x.label}
        srcs={}
        for i,x in enumerate(ins):
            if x.isbranch: srcs.setdefault(labels[x.target],[]).append(i)
        i=0
        while i<len(ins):
            c=ins[i]
            if c.cls in ("valu","mfma","vmem","ds"):
                worst=0
                stack=[(i-1,0)]; seen=set()
                while stack:
                    j,d=stack.pop()
                    while j>=0 and d<MAXWS:
                        if (j,d) in seen: break
                        seen.add((j,d))
                        p=ins[j]
                        if p.label:
                            for s in srcs.get(j,[]): stack.append((s,d))
                            j-=1
                            if j>=0 and ins[j].uncond: break
                            continue
                        if p.cls in ("valu","mfma","vmem","salu"):
                            k=need(p,c)-d
                            if k>worst: worst=k
                        d+=p.ws
                        j-=1
                        if j>=0 and ins[j].uncond and not ins[j+1].label:
                            break
                if worst>0:
                    k=worst
                    new=[]
                    while k>0:
                        m=min(k,16); new.append(Ins(f"  s_nop {m-1}")); k-=m
                    ins[i:i]=new; total+=worst
                    changed=True
                    labels={x.label:ii for ii,x in enumerate(ins) if x.label}
                    srcs={}
                    for ii,x in enumerate(ins):
                        if x.isbranch: srcs.setdefault(labels[x.target],[]).append(ii)
                    i+=len(new)
            i+=1
    return [x.text for x in ins], total

class Kernel:
    def __init__(self, name, grid, block, lds=0, vgpr=64, sgpr=64, agpr=0):
        self.name=name; self.grid=grid; self.block=block; self.lds=lds
        self.vgpr=vgpr; self.sgpr=sgpr; self.agpr=agpr; self.lines=[]; self.nl=0
    def __call__(self, s):
        for l in s.strip("\n").split("\n"):
            l=l.strip()
            if l and not l.startswith(";"): self.lines.append(("" if l.split(";")[0].strip().endswith(":") else "  ")+l)
    def lab(self, base="L"):
        self.nl+=1; return f"{base}_{self.name[:-7]}_{self.nl}"
    def text(self):
        n=self.name
        lines,tot=pad_hazards(self.lines)
        mv=-1; ms=-1; ma=-1
        for l in lines:
            x=Ins(l)
            for (k,i) in (x.dst|x.src):
                if k=="v": mv=max(mv,i)
                elif k=="a": ma=max(ma,i)
                elif k=="s" and i<106: ms=max(ms,i)
        assert mv<self.vgpr, (n,"vgpr",mv,self.vgpr)
        assert ms<self.sgpr, (n,"sgpr",ms,self.sgpr)
        assert ma<self.agpr, (n,"agpr",ma,self.agpr)
        print(f"{n}: {len(lines)} lines, {tot} pad states, max v{mv} s{ms} a{ma}")
        return f".globl {n}\n.p2align 8\n.type {n},@function\n{n}:\n" + "\n".join(lines) + "\n"
    def desc(self):
        acc=(self.vgpr+3)//4*4
        nfv = acc+self.agpr if self.agpr else self.vgpr
        return f""".p2align 6
.amdhsa_kernel {self.name}
  .amdhsa_next_free_vgpr {nfv}
  .amdhsa_next_free_sgpr {self.sgpr}
  .amdhsa_accum_offset {acc}
  .amdhsa_group_segment_fixed_size 0
  .amdhsa_kernarg_size 96
  .amdhsa_user_sgpr_count 2
  .amdhsa_user_sgpr_kernarg_segment_ptr 1
  .amdhsa_system_sgpr_workgroup_id_x 1
.end_amdhsa_kernel
"""
    def launch(self):
        return f"; @launch kernel={self.name} grid=({self.grid},1,1) block=({self.block},1,1) lds={self.lds}"
def emit(order, path, header=""):
    seen=[]
    for k in order:
        if k not in seen: seen.append(k)
    s = header + "\n".join(k.launch() for k in order) + "\n"
    s += '.amdgcn_target "amdgcn-amd-amdhsa--gfx950"\n.text\n'
    s += "".join(k.text() for k in seen)
    s += "CODE_END:\n  s_endpgm\n"
    s += '.section .rodata,"a"\n' + "".join(k.desc() for k in seen)
    open(path,"w").write(s)
```

```python
import sys, importlib
from asmlib2 import *
names = sys.argv[2].split(",") if len(sys.argv)>2 else ["k1","k2","k3","k4"]
ks=[importlib.import_module(n).build() for n in names]
hdr="; NAGphormer: K1 bin edges/transposes/weights, K2 schedule, K3 7 hops (LDS gather), K4 transformer+readout\n"
emit(ks, sys.argv[1], hdr)
```

```python
import re

TRANS = ("v_exp_f32","v_log_f32","v_rcp_f32","v_rsq_f32","v_sqrt_f32","v_sin_f32","v_cos_f32","v_rcp_iflag_f32")
DPPMOD = ("quad_perm","row_shl","row_shr","row_ror","wave_shl","wave_shr","wave_rol","wave_ror","row_mirror","row_half_mirror","row_bcast","row_newbcast")

def regs_of(tok):
    t = tok.strip()
    t = re.sub(r"^-", "", t)
    m = re.match(r"^(abs|neg|sext)\((.*)\)$", t)
    if m: t = m.group(2)
    t = t.strip("|")
    if t == "vcc": return {("s",106),("s",107)}
    if t == "vcc_lo": return {("s",106)}
    if t == "vcc_hi": return {("s",107)}
    if t == "exec": return {("s",126),("s",127)}
    if t == "exec_lo": return {("s",126)}
    if t == "exec_hi": return {("s",127)}
    if t == "m0": return {("s",124)}
    m = re.match(r"^([vsa])(\d+)$", t)
    if m: return {(m.group(1), int(m.group(2)))}
    m = re.match(r"^([vsa])\[(\d+):(\d+)\]$", t)
    if m: return {(m.group(1), i) for i in range(int(m.group(2)), int(m.group(3))+1)}
    return set()

EXEC = {("s",126),("s",127)}
VCC = {("s",106),("s",107)}
M0 = {("s",124)}

class Ins:
    __slots__=("text","op","ops","mods","cls","dst","src","label","target","passes","srcC","srcAB","dpp","sdata","ws","isbranch","uncond","lds_dma","opselw","lanesel")
    def __init__(self, text):
        self.text=text; self.label=None; self.target=None; self.isbranch=False; self.uncond=False
        self.dst=set(); self.src=set(); self.passes=0; self.srcC=set(); self.srcAB=set(); self.dpp=False
        self.sdata=set(); self.ws=1; self.lds_dma=False; self.opselw=False; self.lanesel=set()
        t=text.split(";")[0].strip()
        if t.endswith(":"):
            self.label=t[:-1]; self.cls="label"; self.op=""; self.ws=0; return
        if t=="" or t.startswith("."):
            self.cls="none"; self.op=""; self.ws=0; return
        parts=t.split(None,1); op=parts[0]; self.op=op
        rest=parts[1] if len(parts)>1 else ""
        ops=[o.strip() for o in rest.split(",")] if rest else []
        j=[]; depth=0; cur=""
        for ch in rest:
            if ch=="[": depth+=1
            if ch=="]": depth-=1
            if ch=="," and depth==0: j.append(cur.strip()); cur=""
            else: cur+=ch
        if cur.strip(): j.append(cur.strip())
        mods=""
        if j:
            last=j[-1].split(None,1)
            j[-1]=last[0]
            if len(last)>1: mods=last[1]
        self.ops=j; self.mods=mods
        R=[regs_of(o) for o in j]
        base=re.sub(r"_(e32|e64|dpp|sdwa)$","",op)
        if op.startswith("v_mfma") or op.startswith("v_smfmac"):
            self.cls="mfma"; self.dst=R[0]; self.srcAB=R[1]|R[2]; self.srcC=R[3]; self.src=self.srcAB|self.srcC
            if "4x4x4" in op: self.passes=2
            elif "16x16x32" in op or "16x16x16" in op: self.passes=4
            elif "32x32x16" in op or "32x32x8" in op: self.passes=8
            else: raise Exception("unknown mfma "+op)
        elif op.startswith("v_"):
            self.cls="valu"
            self.dpp = any(m in mods for m in DPPMOD)
            if base.startswith("v_cmpx"):
                self.dst=R[0]|EXEC; self.src=set().union(*R[1:])
            elif base in ("v_swap_b32","v_permlane32_swap_b32","v_permlane16_swap_b32"):
                self.dst=R[0]|R[1]; self.src=R[0]|R[1]
            elif base in ("v_add_co_u32","v_sub_co_u32","v_subrev_co_u32","v_addc_co_u32","v_subb_co_u32","v_subbrev_co_u32","v_mad_u64_u32","v_mad_i64_i32","v_div_scale_f32"):
                self.dst=R[0]|R[1]; self.src=set().union(*R[2:])
            elif base=="v_nop":
                pass
            else:
                self.dst=R[0]; self.src=set().union(*R[1:]) if len(R)>1 else set()
                if base in ("v_fmac_f32","v_dot2c_f32_bf16","v_fmac_f16","v_pk_fmac_f16","v_writelane_b32","v_dot2c_f32_f16") or self.dpp or "dst_unused:UNUSED_PRESERVE" in mods:
                    self.src|=R[0]
                if base in ("v_readlane_b32","v_writelane_b32"): self.lanesel=R[2]
                if base=="v_div_fmas_f32": self.src|=VCC
            if ("dst_sel:" in mods and "dst_sel:DWORD" not in mods): self.opselw=True
            if "op_sel:" in mods and not base.startswith("v_pk_"): self.opselw=True
        elif op.startswith("ds_"):
            self.cls="ds"
            isret = ("_rtn" in op) or op.startswith("ds_read") or op.startswith("ds_bpermute") or op.startswith("ds_permute") or op.startswith("ds_swizzle")
            if isret: self.dst=R[0]; self.src=set().union(*R[1:])
            else: self.src=set().union(*R)
        elif op.startswith("buffer_") or op.startswith("global_") or op.startswith("flat_"):
            self.cls="vmem"
            ml=mods.split()
            if op.startswith("global_load_lds") or (op.startswith("buffer_load") and "lds" in ml):
                self.lds_dma=True; self.src=set().union(*R)|M0
            elif "_load" in op:
                self.dst=R[0]; self.src=set().union(*R[1:])
                if "d16" in op: self.src|=R[0]
            elif "_store" in op:
                self.src=set().union(*R)
                if "x3" in op or "x4" in op:
                    self.sdata = R[0] if op.startswith("buffer_") else R[1]
            elif "_atomic" in op:
                if "sc0" in ml:
                    if op.startswith("buffer_"): self.dst=R[0]; self.src=set().union(*R)
                    else: self.dst=R[0]; self.src=set().union(*R[1:])
                else: self.src=set().union(*R)
            else:
                self.src=set().union(*R) if R else set()
        elif op.startswith("s_"):
            if op=="s_nop":
                self.cls="nop"; self.ws=int(j[0],0)+1
            elif op.startswith("s_cbranch") or op=="s_branch":
                self.cls="branch"; self.isbranch=True; self.target=j[0]; self.uncond=(op=="s_branch")
            elif op=="s_endpgm":
                self.cls="end"; self.uncond=True
            elif op.startswith("s_load") or op.startswith("s_buffer_load") or op.startswith("s_memtime") or op.startswith("s_memrealtime"):
                self.cls="smem"; self.dst=R[0]; self.src=set().union(*R[1:]) if len(R)>1 else set()
            elif op in ("s_waitcnt","s_barrier","s_setprio","s_sleep","s_sethalt"):
                self.cls="misc"
            elif op.startswith("s_cmp") or op.startswith("s_bitcmp"):
                self.cls="salu"; self.src=set().union(*R)
            else:
                self.cls="salu"; self.dst=R[0] if R else set(); self.src=set().union(*R[1:]) if len(R)>1 else set()
                if "saveexec" in op: self.dst|=EXEC; self.src|=EXEC
        else:
            raise Exception("unknown instr: "+text)

def isS(rs): return {r for r in rs if r[0]=="s"}
def isV(rs): return {r for r in rs if r[0] in "va"}

def need(p, c):
    n=0
    pv = p.cls=="valu"
    cbase=re.sub(r"_(e32|e64|dpp|sdwa)$","",c.op)
    pbase=re.sub(r"_(e32|e64|dpp|sdwa)$","",p.op)
    if pv:
        sd=isS(p.dst); vd=isV(p.dst)
        if c.cls=="valu":
            if sd & c.lanesel: n=max(n,4)
            if (sd-EXEC) & isS(c.src): n=max(n,2)
            if (sd&EXEC):
                if EXEC & c.src: n=max(n,2)
                if cbase in ("v_readlane_b32","v_readfirstlane_b32","v_writelane_b32"): n=max(n,4)
                if c.dpp: n=max(n,5)
                if cbase.startswith("v_permlane"): n=max(n,4)
            if cbase=="v_div_fmas_f32" and (sd&VCC): n=max(n,4)
            if c.dpp and (vd & c.src): n=max(n,2)
            if cbase in ("v_readlane_b32","v_readfirstlane_b32") and (vd & c.src): n=max(n,1)
            if cbase.startswith("v_permlane") and (vd & c.src): n=max(n,2)
            if p.opselw and (vd & (c.src|c.dst)): n=max(n,1)
            if pbase in TRANS and (vd & c.src): n=max(n,1)
            if pbase.startswith("v_dot"):
                if vd & (c.src|c.dst):
                    if pbase==cbase and not (vd & (regs_of(c.ops[1])|regs_of(c.ops[2]))): pass
                    else: n=max(n,3)
        if c.cls=="vmem" and (sd & isS(c.src)): n=max(n,5)
        if c.cls in ("vmem","ds") and pbase.startswith("v_dot") and (vd & c.src): n=max(n,3)
        if c.cls in ("vmem","ds") and pbase in TRANS and (vd & c.src): n=max(n,1)
        if c.cls=="mfma":
            if vd & c.src: n=max(n,3 if pbase.startswith("v_dot") else 2)
            if sd & EXEC: n=max(n,4)
    if p.cls=="vmem" and p.sdata:
        if p.sdata & c.dst: n=max(n, 2 if c.cls in("valu","mfma") else 1)
    if p.cls=="salu" and (p.dst & M0) and c.lds_dma: n=max(n,1)
    if p.cls=="mfma":
        i={2:0,4:1,8:2,16:3}[p.passes]
        if c.cls=="mfma":
            if p.dst & c.srcC:
                if p.dst==c.srcC and p.passes==c.passes: n=max(n,[2,0,0,0][i])
                else: n=max(n,[4,6,10,18][i])
            if p.dst & c.srcAB: n=max(n,[5,8,12,20][i])
            if (p.dst & c.dst) and not (p.dst & c.srcC): n=max(n,[4,6,10,18][i])
        elif c.cls in ("valu",):
            if p.dst & (c.src|c.dst): n=max(n,[5,8,12,20][i])
            if p.srcC & c.dst: n=max(n,[1,3,7,15][i])
        elif c.cls in ("vmem","ds"):
            if p.dst & (c.src|c.dst): n=max(n,[5,8,12,20][i])
            if p.srcC & c.dst: n=max(n,[1,3,7,15][i])
    return n

MAXWS=20
def pad_hazards(lines):
    ins=[Ins(l) for l in lines]
    changed=True; total=0
    while changed:
        changed=False
        labels={x.label:i for i,x in enumerate(ins) if x.label}
        srcs={}
        for i,x in enumerate(ins):
            if x.isbranch: srcs.setdefault(labels[x.target],[]).append(i)
        i=0
        while i<len(ins):
            c=ins[i]
            if c.cls in ("valu","mfma","vmem","ds"):
                worst=0
                stack=[(i-1,0)]; seen=set()
                while stack:
                    j,d=stack.pop()
                    while j>=0 and d<MAXWS:
                        if (j,d) in seen: break
                        seen.add((j,d))
                        p=ins[j]
                        if p.label:
                            for s in srcs.get(j,[]): stack.append((s,d))
                            j-=1
                            if j>=0 and ins[j].uncond: break
                            continue
                        if p.cls in ("valu","mfma","vmem","salu"):
                            k=need(p,c)-d
                            if k>worst: worst=k
                        d+=p.ws
                        j-=1
                        if j>=0 and ins[j].uncond and not ins[j+1].label:
                            break
                if worst>0:
                    k=worst
                    new=[]
                    while k>0:
                        m=min(k,16); new.append(Ins(f"  s_nop {m-1}")); k-=m
                    ins[i:i]=new; total+=worst
                    changed=True
                    labels={x.label:ii for ii,x in enumerate(ins) if x.label}
                    srcs={}
                    for ii,x in enumerate(ins):
                        if x.isbranch: srcs.setdefault(labels[x.target],[]).append(ii)
                    i+=len(new)
            i+=1
    return [x.text for x in ins], total

class Kernel:
    def __init__(self, name, grid, block, lds=0, vgpr=64, sgpr=64, agpr=0):
        self.name=name; self.grid=grid; self.block=block; self.lds=lds
        self.vgpr=vgpr; self.sgpr=sgpr; self.agpr=agpr; self.lines=[]; self.nl=0
    def __call__(self, s):
        for l in s.strip("\n").split("\n"):
            l=l.strip()
            if l and not l.startswith(";"): self.lines.append(("" if l.split(";")[0].strip().endswith(":") else "  ")+l)
    def lab(self, base="L"):
        self.nl+=1; return f"{base}_{self.name[:-7]}_{self.nl}"
    def text(self):
        n=self.name
        lines,tot=pad_hazards(self.lines)
        mv=-1; ms=-1; ma=-1
        for l in lines:
            x=Ins(l)
            for (k,i) in (x.dst|x.src):
                if k=="v": mv=max(mv,i)
                elif k=="a": ma=max(ma,i)
                elif k=="s" and i<106: ms=max(ms,i)
        assert mv<self.vgpr, (n,"vgpr",mv,self.vgpr)
        assert ms<self.sgpr, (n,"sgpr",ms,self.sgpr)
        assert ma<self.agpr, (n,"agpr",ma,self.agpr)
        print(f"{n}: {len(lines)} lines, {tot} pad states, max v{mv} s{ms} a{ma}")
        return f".globl {n}\n.p2align 8\n.type {n},@function\n{n}:\n" + "\n".join(lines) + "\n"
    def desc(self):
        acc=(self.vgpr+3)//4*4
        nfv = acc+self.agpr if self.agpr else self.vgpr
        return f""".p2align 6
.amdhsa_kernel {self.name}
  .amdhsa_next_free_vgpr {nfv}
  .amdhsa_next_free_sgpr {self.sgpr}
  .amdhsa_accum_offset {acc}
  .amdhsa_group_segment_fixed_size 0
  .amdhsa_kernarg_size 96
  .amdhsa_user_sgpr_count 2
  .amdhsa_user_sgpr_kernarg_segment_ptr 1
  .amdhsa_system_sgpr_workgroup_id_x 1
.end_amdhsa_kernel
"""
    def launch(self):
        return f"; @launch kernel={self.name} grid=({self.grid},1,1) block=({self.block},1,1) lds={self.lds}"
def emit(order, path, header=""):
    seen=[]
    for k in order:
        if k not in seen: seen.append(k)
    s = header + "\n".join(k.launch() for k in order) + "\n"
    s += '.amdgcn_target "amdgcn-amd-amdhsa--gfx950"\n.text\n'
    s += "".join(k.text() for k in seen)
    s += '.section .rodata,"a"\n' + "".join(k.desc() for k in seen)
    open(path,"w").write(s)
```

```python
import sys
sys.path.insert(0,"g")
from asmlib2 import *
SD="dst_sel:DWORD dst_unused:UNUSED_PAD src0_sel:DWORD"
def mk(name, acc, packed, depth, prio, NW=12, T=96, R=20, idle=1):
    IDX=128-(T//2 if packed else T)
    K=Kernel(name, 1, 64*NW, lds=100352+2048, vgpr=128, sgpr=32)
    K(f"""
    s_load_dwordx2 s[4:5], s[0:1], 80
    v_and_b32 v1, 63, v0
    v_lshrrev_b32 v2, 6, v0
    v_readfirstlane_b32 s3, v2
    v_mov_b32 v3, 0x9E3779B1
    v_lshl_or_b32 v7, v0, 1, 1
    v_mul_lo_u32 v7, v7, v3
    v_mov_b32 v6, 0xffff
    s_mov_b32 s20, 0x55555555
    """)
    for j in range(T):
        K(f"""
        v_mul_lo_u32 v7, v7, v3
        v_add_u32 v1, 1, v1
        v_lshrrev_b32 v4, 19, v7
        v_bfi_b32 v4, 31, v1, v4
        v_lshlrev_b32 v5, 8, v7
        v_cmp_gt_u32 vcc, s20, v5
        v_cndmask_b32 v4, v4, v6, vcc
        """)
        if packed:
            if j&1==0: K(f"v_mov_b32 v{IDX+j//2}, v4")
            else: K(f"v_lshl_or_b32 v{IDX+j//2}, v4, 16, v{IDX+j//2}")
        else: K(f"v_lshlrev_b32 v{IDX+j}, 3, v4")
    for i in range(4,12): K(f"v_mov_b32 v{i}, 0")
    K(f"s_lshr_b32 s11, s3, 2\ns_mov_b32 s10, {R}\ns_waitcnt lgkmcnt(0)\ns_barrier\ns_memtime s[6:7]\ns_waitcnt lgkmcnt(0)\nL_{name}:\ns_memtime s[12:13]")
    DB=12; assert DB+2*depth<=IDX
    if prio=="E": K("s_setprio 1")
    if prio=="G":
        K(f"s_cmp_eq_u32 s11, 2\ns_cbranch_scc1 P_{name}\ns_setprio 1\ns_cmp_eq_u32 s11, 1\ns_cbranch_scc1 P_{name}\ns_setprio 2\nP_{name}:")
    def issue(j):
        b=DB+2*(j%depth)
        if packed:
            K(f"v_lshlrev_b32_sdwa v{2+(j&1)}, 3, v{IDX+j//2} {SD} src1_sel:WORD_{j&1}")
            K(f"ds_read_b64 v[{b}:{b+1}], v{2+(j&1)}")
        else: K(f"ds_read_b64 v[{b}:{b+1}], v{IDX+j}")
    if acc.startswith("ab"):
        W=int(acc[2:])
        for s in range(T+depth):
            c=s-depth
            if c>=0:
                b=DB+2*(c%depth)
                if c==T//2:
                    K("s_memtime s[14:15]")
                    if prio=="E": K("s_setprio 0")
                if c%W==0: K(f"s_waitcnt lgkmcnt({max(0,min(depth-W,T-W-c))})")
                a=[8,0][c&1]
                K(f"v_mfma_f32_4x4x4_16b_bf16 v[{a}:{a+3}], v[4:5], v[{b}:{b+1}], v[{a}:{a+3}]")
            if s<T: issue(s)
    elif acc=="m4":
        for s in range(T+depth):
            c=s-depth
            if c>=0:
                out=min(depth-1,T-1-c); b=DB+2*(c%depth)
                if c==T//2:
                    K("s_memtime s[14:15]")
                    if prio=="E": K("s_setprio 0")
                K(f"s_waitcnt lgkmcnt({out})\nv_mfma_f32_4x4x4_16b_bf16 v[8:11], v[4:5], v[{b}:{b+1}], v[8:11]")
            if s<T: issue(s)
    else:
        assert depth%2==0
        for s in range(0,T+depth,2):
            c=s-depth
            if c>=0:
                out=min(depth-2,T-2-c); b=DB+2*(c%depth)
                if c==T//2:
                    K("s_memtime s[14:15]")
                    if prio=="E": K("s_setprio 0")
                K(f"s_waitcnt lgkmcnt({out})")
                if acc=="m16": K(f"v_mfma_f32_16x16x32_bf16 v[8:11], v[4:7], v[{b}:{b+3}], v[8:11]")
                elif acc=="m4p":
                    K(f"v_mfma_f32_4x4x4_16b_bf16 v[8:11], v[4:5], v[{b}:{b+1}], v[8:11]")
                    if s<T: issue(s)
                    K(f"v_mfma_f32_4x4x4_16b_bf16 v[8:11], v[4:5], v[{b+2}:{b+3}], v[8:11]")
                    if s<T: issue(s+1)
                    continue
            if s<T: issue(s); issue(s+1)
    K(f"""
    s_memtime s[16:17]
    s_barrier
    s_sub_u32 s10, s10, 1
    s_cmp_lg_u32 s10, 0
    s_cbranch_scc1 L_{name}
    s_memtime s[8:9]
    s_waitcnt lgkmcnt(0)
    s_sub_u32 s8, s8, s6
    s_sub_u32 s14, s14, s12
    s_sub_u32 s16, s16, s12
    v_mov_b32 v1, s8
    v_mov_b32 v2, s14
    v_mov_b32 v3, s16
    s_lshl_b32 s3, s3, 2
    v_mov_b32 v0, s3
    global_store_dword v0, v1, s[4:5]
    global_store_dword v0, v2, s[4:5] offset:64
    global_store_dword v0, v3, s[4:5] offset:128
    s_endpgm
    """)
    return K
cfgs=[("m4",0,6,"E"),("m4",0,6,"G"),("m4",0,6,""),("ab1",0,6,"G"),("ab2",0,6,""),("ab2",0,6,"G"),("ab2",0,8,""),("ab2",0,8,"G"),("ab3",0,6,"G"),("ab1",0,8,"G"),("m4",0,8,"G"),("ab2",0,7,"G"),("ab1",0,7,"G")]
ks=[mk(f"t{i}_kernel",*c) for i,c in enumerate(cfgs)]
emit(ks,"mb2.s")
import json; json.dump(cfgs,open("mb2.json","w"))
```

```python
import re

TRANS = ("v_exp_f32","v_log_f32","v_rcp_f32","v_rsq_f32","v_sqrt_f32","v_sin_f32","v_cos_f32","v_rcp_iflag_f32")
DPPMOD = ("quad_perm","row_shl","row_shr","row_ror","wave_shl","wave_shr","wave_rol","wave_ror","row_mirror","row_half_mirror","row_bcast","row_newbcast")

def regs_of(tok):
    t = tok.strip()
    t = re.sub(r"^-", "", t)
    m = re.match(r"^(abs|neg|sext)\((.*)\)$", t)
    if m: t = m.group(2)
    t = t.strip("|")
    if t == "vcc": return {("s",106),("s",107)}
    if t == "vcc_lo": return {("s",106)}
    if t == "vcc_hi": return {("s",107)}
    if t == "exec": return {("s",126),("s",127)}
    if t == "exec_lo": return {("s",126)}
    if t == "exec_hi": return {("s",127)}
    if t == "m0": return {("s",124)}
    m = re.match(r"^([vsa])(\d+)$", t)
    if m: return {(m.group(1), int(m.group(2)))}
    m = re.match(r"^([vsa])\[(\d+):(\d+)\]$", t)
    if m: return {(m.group(1), i) for i in range(int(m.group(2)), int(m.group(3))+1)}
    return set()

EXEC = {("s",126),("s",127)}
VCC = {("s",106),("s",107)}
M0 = {("s",124)}

class Ins:
    __slots__=("text","op","ops","mods","cls","dst","src","label","target","passes","srcC","srcAB","dpp","sdata","ws","isbranch","uncond","lds_dma","opselw","lanesel")
    def __init__(self, text):
        self.text=text; self.label=None; self.target=None; self.isbranch=False; self.uncond=False
        self.dst=set(); self.src=set(); self.passes=0; self.srcC=set(); self.srcAB=set(); self.dpp=False
        self.sdata=set(); self.ws=1; self.lds_dma=False; self.opselw=False; self.lanesel=set()
        t=text.split(";")[0].strip()
        if t.endswith(":"):
            self.label=t[:-1]; self.cls="label"; self.op=""; self.ws=0; return
        if t=="" or t.startswith("."):
            self.cls="none"; self.op=""; self.ws=0; return
        parts=t.split(None,1); op=parts[0]; self.op=op
        rest=parts[1] if len(parts)>1 else ""
        ops=[o.strip() for o in rest.split(",")] if rest else []
        j=[]; depth=0; cur=""
        for ch in rest:
            if ch=="[": depth+=1
            if ch=="]": depth-=1
            if ch=="," and depth==0: j.append(cur.strip()); cur=""
            else: cur+=ch
        if cur.strip(): j.append(cur.strip())
        mods=""
        if j:
            last=j[-1].split(None,1)
            j[-1]=last[0]
            if len(last)>1: mods=last[1]
        self.ops=j; self.mods=mods
        R=[regs_of(o) for o in j]
        base=re.sub(r"_(e32|e64|dpp|sdwa)$","",op)
        if op.startswith("v_mfma") or op.startswith("v_smfmac"):
            self.cls="mfma"; self.dst=R[0]; self.srcAB=R[1]|R[2]; self.srcC=R[3]; self.src=self.srcAB|self.srcC
            if op.startswith("v_smfmac"): self.srcAB=R[1]|R[2]|R[3]; self.srcC=R[0]; self.src=self.srcAB|self.srcC
            if "4x4x4" in op: self.passes=2
            elif "16x16x64" in op: self.passes=SMP
            elif "16x16x32" in op or "16x16x16" in op: self.passes=4
            elif "32x32x16" in op or "32x32x8" in op: self.passes=8
            else: raise Exception("unknown mfma "+op)
        elif op.startswith("v_"):
            self.cls="valu"
            self.dpp = any(m in mods for m in DPPMOD)
            if base.startswith("v_cmpx"):
                self.dst=R[0]|EXEC; self.src=set().union(*R[1:])
            elif base in ("v_swap_b32","v_permlane32_swap_b32","v_permlane16_swap_b32"):
                self.dst=R[0]|R[1]; self.src=R[0]|R[1]
            elif base in ("v_add_co_u32","v_sub_co_u32","v_subrev_co_u32","v_addc_co_u32","v_subb_co_u32","v_subbrev_co_u32","v_mad_u64_u32","v_mad_i64_i32","v_div_scale_f32"):
                self.dst=R[0]|R[1]; self.src=set().union(*R[2:])
            elif base=="v_nop":
                pass
            else:
                self.dst=R[0]; self.src=set().union(*R[1:]) if len(R)>1 else set()
                if base in ("v_fmac_f32","v_dot2c_f32_bf16","v_fmac_f16","v_pk_fmac_f16","v_writelane_b32","v_dot2c_f32_f16") or self.dpp or "dst_unused:UNUSED_PRESERVE" in mods:
                    self.src|=R[0]
                if base in ("v_readlane_b32","v_writelane_b32"): self.lanesel=R[2]
                if base=="v_div_fmas_f32": self.src|=VCC
            if ("dst_sel:" in mods and "dst_sel:DWORD" not in mods): self.opselw=True
            if "op_sel:" in mods and not base.startswith("v_pk_"): self.opselw=True
        elif op.startswith("ds_"):
            self.cls="ds"
            isret = ("_rtn" in op) or op.startswith("ds_read") or op.startswith("ds_bpermute") or op.startswith("ds_permute") or op.startswith("ds_swizzle")
            if isret: self.dst=R[0]; self.src=set().union(*R[1:])
            else: self.src=set().union(*R)
        elif op.startswith("buffer_") or op.startswith("global_") or op.startswith("flat_"):
            self.cls="vmem"
            ml=mods.split()
            if op.startswith("global_load_lds") or (op.startswith("buffer_load") and "lds" in ml):
                self.lds_dma=True; self.src=set().union(*R)|M0
            elif "_load" in op:
                self.dst=R[0]; self.src=set().union(*R[1:])
                if "d16" in op: self.src|=R[0]
            elif "_store" in op:
                self.src=set().union(*R)
                if "x3" in op or "x4" in op:
                    self.sdata = R[0] if op.startswith("buffer_") else R[1]
            elif "_atomic" in op:
                if "sc0" in ml:
                    if op.startswith("buffer_"): self.dst=R[0]; self.src=set().union(*R)
                    else: self.dst=R[0]; self.src=set().union(*R[1:])
                else: self.src=set().union(*R)
            else:
                self.src=set().union(*R) if R else set()
        elif op.startswith("s_"):
            if op=="s_nop":
                self.cls="nop"; self.ws=int(j[0],0)+1
            elif op.startswith("s_cbranch") or op=="s_branch":
                self.cls="branch"; self.isbranch=True; self.target=j[0]; self.uncond=(op=="s_branch")
            elif op=="s_endpgm":
                self.cls="end"; self.uncond=True
            elif op.startswith("s_load") or op.startswith("s_buffer_load") or op.startswith("s_memtime") or op.startswith("s_memrealtime"):
                self.cls="smem"; self.dst=R[0]; self.src=set().union(*R[1:]) if len(R)>1 else set()
            elif op in ("s_waitcnt","s_barrier","s_setprio","s_sleep","s_sethalt"):
                self.cls="misc"
            elif op.startswith("s_cmp") or op.startswith("s_bitcmp"):
                self.cls="salu"; self.src=set().union(*R)
            else:
                self.cls="salu"; self.dst=R[0] if R else set(); self.src=set().union(*R[1:]) if len(R)>1 else set()
                if "saveexec" in op: self.dst|=EXEC; self.src|=EXEC
        else:
            raise Exception("unknown instr: "+text)

def isS(rs): return {r for r in rs if r[0]=="s"}
def isV(rs): return {r for r in rs if r[0] in "va"}

def need(p, c):
    n=0
    pv = p.cls=="valu"
    cbase=re.sub(r"_(e32|e64|dpp|sdwa)$","",c.op)
    pbase=re.sub(r"_(e32|e64|dpp|sdwa)$","",p.op)
    if pv:
        sd=isS(p.dst); vd=isV(p.dst)
        if c.cls=="valu":
            if sd & c.lanesel: n=max(n,4)
            if (sd-EXEC) & isS(c.src): n=max(n,2)
            if (sd&EXEC):
                if EXEC & c.src: n=max(n,2)
                if cbase in ("v_readlane_b32","v_readfirstlane_b32","v_writelane_b32"): n=max(n,4)
                if c.dpp: n=max(n,5)
                if cbase.startswith("v_permlane"): n=max(n,4)
            if cbase=="v_div_fmas_f32" and (sd&VCC): n=max(n,4)
            if c.dpp and (vd & c.src): n=max(n,2)
            if cbase in ("v_readlane_b32","v_readfirstlane_b32") and (vd & c.src): n=max(n,1)
            if cbase.startswith("v_permlane") and (vd & c.src): n=max(n,2)
            if p.opselw and (vd & (c.src|c.dst)): n=max(n,1)
            if pbase in TRANS and (vd & c.src): n=max(n,1)
            if pbase.startswith("v_dot"):
                if vd & (c.src|c.dst):
                    if pbase==cbase and not (vd & (regs_of(c.ops[1])|regs_of(c.ops[2]))): pass
                    else: n=max(n,3)
        if c.cls=="vmem" and (sd & isS(c.src)): n=max(n,5)
        if c.cls in ("vmem","ds") and pbase.startswith("v_dot") and (vd & c.src): n=max(n,3)
        if c.cls in ("vmem","ds") and pbase in TRANS and (vd & c.src): n=max(n,1)
        if c.cls=="mfma":
            if vd & c.src: n=max(n,3 if pbase.startswith("v_dot") else 2)
            if sd & EXEC: n=max(n,4)
    if p.cls=="vmem" and p.sdata:
        if p.sdata & c.dst: n=max(n, 2 if c.cls in("valu","mfma") else 1)
    if p.cls=="salu" and (p.dst & M0) and (c.lds_dma or "addtid" in c.op): n=max(n,1)
    if p.cls=="mfma":
        i={2:0,4:1,8:2,16:3}[p.passes]
        if c.cls=="mfma":
            if p.dst & c.srcC:
                if p.dst==c.srcC and p.passes==c.passes: n=max(n,[2,0,0,0][i])
                else: n=max(n,[4,6,10,18][i])
            if p.dst & c.srcAB: n=max(n,[5,8,12,20][i])
            if (p.dst & c.dst) and not (p.dst & c.srcC): n=max(n,[4,6,10,18][i])
        elif c.cls in ("valu",):
            if p.dst & (c.src|c.dst): n=max(n,[5,8,12,20][i])
            if p.srcC & c.dst: n=max(n,[1,3,7,15][i])
        elif c.cls in ("vmem","ds"):
            if p.dst & (c.src|c.dst): n=max(n,[5,8,12,20][i])
            if p.srcC & c.dst: n=max(n,[1,3,7,15][i])
    return n

MAXWS=20
SMP=8
def pad_hazards(lines):
    ins=[Ins(l) for l in lines]
    changed=True; total=0
    while changed:
        changed=False
        labels={x.label:i for i,x in enumerate(ins) if x.label}
        srcs={}
        for i,x in enumerate(ins):
            if x.isbranch: srcs.setdefault(labels[x.target],[]).append(i)
        i=0
        while i<len(ins):
            c=ins[i]
            if c.cls in ("valu","mfma","vmem","ds"):
                worst=0
                stack=[(i-1,0)]; seen=set()
                while stack:
                    j,d=stack.pop()
                    while j>=0 and d<MAXWS:
                        if (j,d) in seen: break
                        seen.add((j,d))
                        p=ins[j]
                        if p.label:
                            for s in srcs.get(j,[]): stack.append((s,d))
                            j-=1
                            if j>=0 and ins[j].uncond: break
                            continue
                        if p.cls in ("valu","mfma","vmem","salu"):
                            k=need(p,c)-d
                            if k>worst: worst=k
                        d+=p.ws
                        j-=1
                        if j>=0 and ins[j].uncond and not ins[j+1].label:
                            break
                if worst>0:
                    k=worst
                    new=[]
                    while k>0:
                        m=min(k,16); new.append(Ins(f"  s_nop {m-1}")); k-=m
                    ins[i:i]=new; total+=worst
                    changed=True
                    labels={x.label:ii for ii,x in enumerate(ins) if x.label}
                    srcs={}
                    for ii,x in enumerate(ins):
                        if x.isbranch: srcs.setdefault(labels[x.target],[]).append(ii)
                    i+=len(new)
            i+=1
    return [x.text for x in ins], total

class Kernel:
    def __init__(self, name, grid, block, lds=0, vgpr=64, sgpr=64, agpr=0):
        self.name=name; self.grid=grid; self.block=block; self.lds=lds
        self.vgpr=vgpr; self.sgpr=sgpr; self.agpr=agpr; self.lines=[]; self.nl=0
    def __call__(self, s):
        for l in s.strip("\n").split("\n"):
            l=l.strip()
            if l and not l.startswith(";"): self.lines.append(("" if l.split(";")[0].strip().endswith(":") else "  ")+l)
    def lab(self, base="L"):
        self.nl+=1; return f"{base}_{self.name[:-7]}_{self.nl}"
    def text(self):
        n=self.name
        lines,tot=pad_hazards(self.lines)
        mv=-1; ms=-1; ma=-1
        for l in lines:
            x=Ins(l)
            for (k,i) in (x.dst|x.src):
                if k=="v": mv=max(mv,i)
                elif k=="a": ma=max(ma,i)
                elif k=="s" and i<106: ms=max(ms,i)
        assert mv<self.vgpr, (n,"vgpr",mv,self.vgpr)
        assert ms<self.sgpr, (n,"sgpr",ms,self.sgpr)
        assert ma<self.agpr, (n,"agpr",ma,self.agpr)
        print(f"{n}: {len(lines)} lines, {tot} pad states, max v{mv} s{ms} a{ma}")
        return f".globl {n}\n.p2align 8\n.type {n},@function\n{n}:\n" + "\n".join(lines) + "\n"
    def desc(self):
        acc=(self.vgpr+3)//4*4
        nfv = acc+self.agpr if self.agpr else self.vgpr
        return f""".p2align 6
.amdhsa_kernel {self.name}
  .amdhsa_next_free_vgpr {nfv}
  .amdhsa_next_free_sgpr {self.sgpr}
  .amdhsa_accum_offset {acc}
  .amdhsa_group_segment_fixed_size 0
  .amdhsa_kernarg_size 96
  .amdhsa_user_sgpr_count 2
  .amdhsa_user_sgpr_kernarg_segment_ptr 1
  .amdhsa_system_sgpr_workgroup_id_x 1
.end_amdhsa_kernel
"""
    def launch(self):
        return f"; @launch kernel={self.name} grid=({self.grid},1,1) block=({self.block},1,1) lds={self.lds}"
def emit(order, path, header=""):
    seen=[]
    for k in order:
        if k not in seen: seen.append(k)
    s = header + "\n".join(k.launch() for k in order) + "\n"
    s += '.amdgcn_target "amdgcn-amd-amdhsa--gfx950"\n.text\n'
    s += "".join(k.text() for k in seen)
    s += "CODE_END:\n  s_endpgm\n"
    s += '.section .rodata,"a"\n' + "".join(k.desc() for k in seen)
    open(path,"w").write(s)
```
